```python
import torch

def _softmax(x, axis=-1):
    return torch.softmax(x, dim=axis)
def _gelu(x):
    return torch.nn.functional.gelu(x, approximate="tanh")
def _silu(x):
    return torch.nn.functional.silu(x)
def _sigmoid(x):
    return torch.sigmoid(x)
def _layernorm(x, axis=-1, eps=1e-5):
    m = x.mean(dim=axis, keepdim=True)
    v = x.var(dim=axis, keepdim=True, unbiased=False)
    return (x - m) / torch.sqrt(v + eps)
def _scatter_add(tgt, idx, src, axis=0):
    return tgt.clone().index_add_(axis, idx, src)
def _segment_sum(src, seg, n):
    out = torch.zeros((n,) + src.shape[1:], dtype=src.dtype)
    return out.index_add_(0, seg, src)
def _pad(x, pw):
    flat = tuple(v for pair in reversed(pw) for v in pair)
    return torch.nn.functional.pad(x, flat)

kernel_name = 'gated_mix__linear_attn_block__dense_activation_squared_relu__prompt'

def setup_inputs():

    _w = (lambda a: (lambda t: t.to(torch.bfloat16) if t.is_floating_point() else t)(torch.as_tensor(a)))
    def _A_setup():
        B, S, D = 1, 2048, 448
        return {
            "x": _w((lambda *s: torch.randn(*s, dtype=torch.bfloat16) * 0.05)(B, S, D)),
            "wqkv": _w((lambda *s: torch.randn(*s, dtype=torch.bfloat16) * 0.8)(D, 3 * D)),
            "wo": _w((lambda *s: torch.randn(*s, dtype=torch.bfloat16) * 0.2)(D, D)),
        }
    _A_in = _A_setup()

    def _B_setup():
        B, S, D, F = 1, 2048, 448, 1792
        return {
            "x": _w((lambda *s: torch.randn(*s, dtype=torch.bfloat16) * 0.05)(B, S, D)),
            "w1": _w((lambda *s: torch.randn(*s, dtype=torch.bfloat16) * 0.05)(D, F)),
            "b1": _w((lambda *s: torch.randn(*s, dtype=torch.bfloat16) * 0.05)(F)),
            "w2": _w((lambda *s: torch.randn(*s, dtype=torch.bfloat16) * 0.05)(F, D)),
            "b2": _w((lambda *s: torch.randn(*s, dtype=torch.bfloat16) * 0.05)(D)),
        }
    _B_in = _B_setup()

    return {
        "A_x": _A_in["x"],
        "A_wqkv": _A_in["wqkv"],
        "A_wo": _A_in["wo"],
        "B_x": _B_in["x"],
        "B_w1": _B_in["w1"],
        "B_b1": _B_in["b1"],
        "B_w2": _B_in["w2"],
        "B_b2": _B_in["b2"],
        "gate_w": _w((lambda *s: torch.randn(*s, dtype=torch.bfloat16) * 0.05)(448) * 16.0),
    }

def reference(A_x, A_wqkv, A_wo, B_x, B_w1, B_b1, B_w2, B_b2, gate_w):
    def _A_ref(x, wqkv, wo):
        B, S, D = x.shape
        H = 16; Dh = D // H
        qkv = (lambda x, *d: x.permute(*d))((x @ wqkv).reshape(B, S, 3, H, Dh), 2, 0, 3, 1, 4)
        q, k, v = qkv[0], qkv[1], qkv[2]
        phi = lambda t: torch.where(t > 0, t + 1, torch.exp(t)) + 1e-6
        pq, pk = phi(q), phi(k)
        kv = torch.einsum("bhsd,bhse->bhde", pk, v)
        z = torch.einsum("bhsd->bhd", pk)
        num = torch.einsum("bhqd,bhde->bhqe", pq, kv)
        den = torch.einsum("bhqd,bhd->bhq", pq, z)[..., None] + 1e-6
        o = num / den
        return (lambda x, *d: x.permute(*d))(o, 0, 2, 1, 3).reshape(B, S, D) @ wo

    def _B_ref(x, w1, b1, w2, b2):
        h = torch.einsum("bsd,df->bsf", x, w1) + b1
        zero = torch.zeros_like(h)
        r = torch.where(h > zero, h, zero)
        h = r * r
        out = torch.einsum("bsf,fd->bsd", h, w2) + b2
        return out

    x = A_x
    g = _sigmoid((x * gate_w).sum(-1, keepdims=True))
    a = _A_ref(x, A_wqkv, A_wo)
    b = _B_ref(x, B_w1, B_b1, B_w2, B_b2)
    return g * a + (1 - g) * b
```

```python
import re

REG_RE = re.compile(r'^(-|\|)?(v|a|s)(\d+)\|?$')
RNG_RE = re.compile(r'^(v|a|s)\[(\d+):(\d+)\]$')

def regs_of(tok):
    tok = tok.strip()
    tok = tok.replace("abs(", "").replace(")", "").replace("neg(", "")
    if tok.startswith("-"): tok = tok[1:]
    tok = tok.strip("|")
    m = RNG_RE.match(tok)
    if m: return [(m.group(1), i) for i in range(int(m.group(2)), int(m.group(3)) + 1)]
    m = re.match(r'^(v|a|s)(\d+)$', tok)
    if m: return [(m.group(1), int(m.group(2)))]
    if tok == "vcc": return [("s", "vcc_lo"), ("s", "vcc_hi")]
    if tok == "exec": return [("s", "exec_lo"), ("s", "exec_hi")]
    if tok in ("m0", "vcc_lo", "vcc_hi", "exec_lo", "exec_hi"): return [("s", tok)]
    if tok == "scc": return [("s", "scc")]
    return []

TRANS = ("v_exp_f32", "v_log_f32", "v_rcp_f32", "v_rsq_f32", "v_sqrt_f32", "v_sin_f32", "v_cos_f32")

class Ins:
    __slots__ = ("text", "op", "ops", "mods", "kind", "dst", "src", "passes", "srcC", "data")
    def __init__(self, text):
        self.text = text
        t = text.split(";")[0].strip()
        parts = t.split(None, 1)
        self.op = parts[0]
        rest = parts[1] if len(parts) > 1 else ""
        toks = [x.strip() for x in rest.split(",")] if rest else []
        mods = []
        if toks:
            last = toks[-1].split()
            toks[-1] = last[0] if last else ""
            mods = last[1:]
        self.ops = toks; self.mods = mods
        op = self.op
        self.passes = 0; self.srcC = []; self.data = []
        R = lambda i: regs_of(toks[i]) if i < len(toks) else []
        allr = lambda lo: [r for i in range(lo, len(toks)) for r in regs_of(toks[i])]
        if op.startswith("v_mfma"):
            self.kind = "mfma"; self.dst = R(0); self.src = R(1) + R(2) + R(3); self.srcC = R(3)
            self.passes = 8 if "32x32" in op else 4
        elif op.startswith("ds_read") or op.startswith("ds_bpermute"):
            self.kind = "dsr"; self.dst = R(0); self.src = allr(1)
        elif op.startswith("ds_"):
            self.kind = "dsw"; self.dst = []; self.src = allr(0); self.data = allr(1)
        elif op.startswith("buffer_load") or op.startswith("global_load"):
            if "lds" in mods:
                self.kind = "dma"; self.dst = []; self.src = allr(0) + [("s", "m0")]
            else:
                self.kind = "vml"; self.dst = R(0); self.src = allr(1)
        elif op.startswith("buffer_store") or op.startswith("global_store"):
            self.kind = "vms"; self.dst = []; self.src = allr(0)
            self.data = R(0) if op.startswith("buffer") else R(1)
        elif op.startswith("buffer_atomic") or op.startswith("global_atomic"):
            self.kind = "vms"; self.dst = R(0) if "sc0" in mods else []; self.src = allr(0); self.data = R(0)
        elif op.startswith("s_load") or op.startswith("s_memtime") or op.startswith("s_memrealtime"):
            self.kind = "smem"; self.dst = R(0); self.src = allr(1)
        elif op.startswith("v_"):
            self.kind = "valu"
            if op.startswith("v_cmp"):
                self.dst = R(0); self.src = allr(1)
            elif op.startswith("v_permlane32_swap") or op.startswith("v_permlane16_swap"):
                self.dst = R(0) + R(1); self.src = R(0) + R(1)
            elif op.startswith("v_readfirstlane") or op.startswith("v_readlane"):
                self.dst = R(0); self.src = allr(1)
            elif op.startswith(("v_add_co", "v_sub_co", "v_addc_co")):
                self.dst = R(0) + R(1); self.src = allr(2)
            else:
                self.dst = R(0); self.src = allr(1)
                if op.startswith(("v_fmac", "v_dot2c", "v_pk_fmac")): self.src += R(0)
                if op.startswith("v_cndmask") and len(toks) == 3: self.src += regs_of("vcc")
        elif op.startswith("s_"):
            self.kind = "salu"
            if op in ("s_waitcnt", "s_nop", "s_barrier", "s_branch", "s_endpgm", "s_sleep", "s_setprio") or op.startswith("s_cbranch"):
                self.kind = "ctl"; self.dst = []; self.src = []
            elif op.startswith("s_cmp"):
                self.dst = [("s", "scc")]; self.src = allr(0)
            else:
                self.dst = R(0); self.src = allr(1)
                if "saveexec" in op: self.dst += regs_of("exec"); self.src += regs_of("exec")
        else:
            raise ValueError("unknown op " + text)

def is_v(r): return r[0] in ("v", "a")

class Asm:
    def __init__(self):
        self.items = []
        self.uid = 0
        self.vmq = []
        self.lgq = []
    def __call__(self, s):
        for l in s.split("\n"):
            l = l.strip()
            if not l: continue
            if l.endswith(":") or l.startswith(";") or l.startswith("."):
                self.items.append(l)
            else:
                self.items.append(Ins(l))
    def label(self, base="L"):
        self.uid += 1
        return f"{base}_{self.uid}"
    def vm(self, text, tag=None):
        self(text); self.vmq.append(tag)
    def lg(self, text, tag=None):
        self(text); self.lgq.append(tag)
    def vm_count_after(self, tags):
        if not isinstance(tags, list): tags = [tags]
        idx = max((i for i, t in enumerate(self.vmq) if t in tags), default=None)
        assert idx is not None, ("vm tag not found", tags)
        return len(self.vmq) - 1 - idx
    def lg_count_after(self, tags):
        if not isinstance(tags, list): tags = [tags]
        idx = max((i for i, t in enumerate(self.lgq) if t in tags), default=None)
        assert idx is not None, ("lg tag not found", tags)
        return len(self.lgq) - 1 - idx
    def wait_vm(self, tags, also_lg=None):
        n = self.vm_count_after(tags)
        assert n <= 63, ("vmcnt overflow", n, tags)
        s = f"s_waitcnt vmcnt({n})"
        if also_lg is not None: s += f" lgkmcnt({also_lg})"
        self(s)
    def wait_lg(self, tags):
        n = self.lg_count_after(tags)
        n = min(n, 15)
        self(f"s_waitcnt lgkmcnt({n})")
    def wait_all(self):
        self("s_waitcnt vmcnt(0) lgkmcnt(0)")

    def finalize(self, check_loads=True):
        out = []
        hist = []
        pos = 0
        pend_vm = []
        pend_lg = []
        errors = []
        def need(ins):
            n = 0
            src = set(ins.src); dst = set(ins.dst)
            for (p, q) in reversed(hist[-24:]):
                d = pos - q - 1
                req = 0
                pd = set(p.dst)
                if p.kind == "valu":
                    vd = {r for r in pd if is_v(r)}
                    sd = {r for r in pd if not is_v(r)}
                    if ins.kind == "mfma" and vd & src: req = max(req, 2)
                    if ins.kind == "valu":
                        if p.op.split("_e")[0] in TRANS or p.op in TRANS:
                            if vd & src and not (ins.op in TRANS): req = max(req, 1)
                        if ins.op.startswith(("v_readfirstlane", "v_readlane")) and vd & src: req = max(req, 1)
                        if ins.op.startswith("v_permlane") and vd & src: req = max(req, 2)
                        if ("dpp" in ins.op or any(m.startswith(("row_", "quad_perm")) for m in ins.mods)) and vd & src: req = max(req, 2)
                        if sd & src: req = max(req, 2)
                    if ins.kind in ("vml", "vms", "dma") and sd & src: req = max(req, 5)
                    if ins.kind in ("salu",) and sd & src: req = max(req, 2)
                    if ins.kind == "ctl" and ins.op.startswith("s_cbranch_vcc") and ("s", "vcc_lo") in sd: req = max(req, 5)
                    if ins.kind == "mfma" and ("s", "exec_lo") in sd: req = max(req, 4)
                if p.kind == "mfma":
                    lat = 12 if p.passes == 8 else 8
                    if ins.kind == "mfma":
                        ab = set(ins.src) - set(ins.srcC)
                        ab = set(regs_of(ins.ops[1]) + regs_of(ins.ops[2]))
                        if pd & ab: req = max(req, lat)
                        c = set(ins.srcC)
                        if pd & c and not (c == pd and ins.passes == p.passes): req = max(req, lat - 2)
                        if pd & dst and not (pd & c): req = max(req, lat)
                    else:
                        if pd & (src | dst): req = max(req, lat)
                        if ins.kind == "valu" and set(p.srcC) & dst: req = max(req, 7 if p.passes == 8 else 3)
                if p.kind == "vms" and len(p.data) >= 3:
                    if set(p.data) & dst: req = max(req, 2 if ins.kind == "valu" else 1)
                if p.kind == "salu" and ("s", "m0") in pd and ins.kind == "dma": req = max(req, 1)
                if req > d: n = max(n, req - d)
            return n
        for it in self.items:
            if isinstance(it, str):
                out.append(it if it.endswith(":") or it.startswith(".") else "    " + it)
                if it.endswith(":"):
                    pass
                continue
            ins = it
            n = need(ins)
            if n > 0:
                k = n
                while k > 0:
                    c = min(k, 16); out.append(f"    s_nop {c-1}"); k -= c
                pos += n
            if check_loads:
                touched = set(ins.src) | set(ins.dst)
                if ins.op == "s_waitcnt":
                    m = re.search(r"vmcnt\((\d+)\)", ins.text)
                    if m:
                        k = int(m.group(1)); pend_vm = pend_vm[len(pend_vm) - k:] if k < len(pend_vm) else pend_vm
                        if k == 0: pend_vm = []
                    m = re.search(r"lgkmcnt\((\d+)\)", ins.text)
                    if m:
                        k = int(m.group(1))
                        if k == 0: pend_lg = []
                        elif not any(x[1] == "smem" for x in pend_lg):
                            pend_lg = pend_lg[len(pend_lg) - k:] if k < len(pend_lg) else pend_lg
                else:
                    for (dr, kind, tx) in pend_vm:
                        if dr & touched: errors.append(f"VM load not waited: [{tx}] used by [{ins.text}]")
                    for (dr, kind, tx) in pend_lg:
                        if dr & touched: errors.append(f"LGKM load not waited: [{tx}] used by [{ins.text}]")
                if ins.kind in ("vml", "vms", "dma"): pend_vm.append((set(ins.dst), ins.kind, ins.text))
                if ins.kind in ("dsr", "dsw", "smem"): pend_lg.append((set(ins.dst), ins.kind, ins.text))
                if ins.op == "s_endpgm" or ins.op == "s_branch":
                    pend_vm = []; pend_lg = []
            out.append("    " + ins.text)
            if ins.op == "s_nop":
                pos += int(ins.ops[0]) + 1
            else:
                pos += 1
            hist.append((ins, pos - 1))
            if len(hist) > 64: hist = hist[-32:]
        if errors:
            raise RuntimeError("\n".join(errors[:20]))
        return "\n".join(out) + "\n"
```

```python
NAME = "gated_mix__linear_attn_block__dense_activation_squared_relu__prompt"

HEADER = """; Kernarg layout (96 bytes, ptrs only, base s[0:1]):
"""

class Asm:
    def __init__(self):
        self.lines = []
        self.uid = 0
    def __call__(self, s=""):
        for l in s.split("\n"):
            self.lines.append("    " + l.strip() if l.strip() and not l.strip().endswith(":") else l.strip())
    def label(self, base="L"):
        self.uid += 1
        return f"{base}_{self.uid}"
    def text(self):
        return "\n".join(self.lines) + "\n"

def kernel_wrap(name, body, vgpr=256, sgpr=102, accum=None):
    if accum is None: accum = min(256, (vgpr + 3) // 4 * 4)
    s = f""".text
.globl {name}
.p2align 8
.type {name},@function
{name}:
{body}
"""
    d = f""".section .rodata,"a"
.p2align 6
.amdhsa_kernel {name}
  .amdhsa_next_free_vgpr {vgpr}
  .amdhsa_next_free_sgpr {sgpr}
  .amdhsa_accum_offset {accum}
  .amdhsa_group_segment_fixed_size 0
  .amdhsa_kernarg_size 96
  .amdhsa_user_sgpr_count 2
  .amdhsa_user_sgpr_kernarg_segment_ptr 1
  .amdhsa_system_sgpr_workgroup_id_x 1
.end_amdhsa_kernel
"""
    return s, d

def file_wrap(launch_lines, kernels):
    out = HEADER + "\n".join(launch_lines) + "\n" + '.amdgcn_target "amdgcn-amd-amdhsa--gfx950"\n'
    for c, d in kernels: out += c
    for c, d in kernels: out += d
    return out

def srd(a, dst, base_lo, base_hi, nbytes):
    a(f"s_mov_b32 s{dst}, s{base_lo}")
    a(f"s_mov_b32 s{dst+1}, s{base_hi}")
    a(f"s_mov_b32 s{dst+2}, {nbytes}")
    a(f"s_mov_b32 s{dst+3}, 0x00020000")
```

```python
import sys
sys.path.insert(0, "work")
from asmlib import Asm
from gen import NAME, HEADER, kernel_wrap, file_wrap

HF_OFF = 0
HF_RB = 112 * 1024
PQ_OFF = HF_OFF + 64 * HF_RB
PQ_RB = 32 * 1024
G_OFF = PQ_OFF + 64 * PQ_RB
KV_OFF = G_OFF + 8192
TRASH_OFF = KV_OFF + 65536
WS_USED = TRASH_OFF + 65536
LDS_BYTES = 163840
MISC = 9 * 16384

P_AX, P_WQKV, P_WO, P_BX, P_W1, P_B1, P_W2, P_B2, P_GW, P_OUT, P_DBG, P_WS = 20, 22, 24, 26, 28, 30, 32, 34, 36, 38, 40, 42
SX, SW, SWS, S2, S3 = 44, 48, 52, 56, 60
sWAVE, sRB, sROLE, sT0, sT1, sT2, sT3 = 64, 65, 66, 67, 68, 69, 70
sWL, sWX, sROW0, sCOL0, sCOL1, sPITCH = 71, 72, 73, 74, 75, 76
sG, sH0, sNH, sOUTA, sOUTB = 77, 78, 79, 80, 81
sM_J28, sM_UP, sM_LO = 82, 84, 86
sLOG2E, sEPS = 88, 89

def srd(a, dst, base, nbytes):
    a(f"s_mov_b32 s{dst}, s{base}")
    a(f"s_mov_b32 s{dst+1}, s{base+1}")
    a(f"s_mov_b32 s{dst+2}, {nbytes}")
    a(f"s_mov_b32 s{dst+3}, 0x00020000")

def load_kernargs(a):
    a("s_load_dwordx16 s[20:35], s[0:1], 0")
    a("s_load_dwordx8 s[36:43], s[0:1], 64")

def vr(b, n=4): return f"v[{b}:{b+n-1}]"
def ar(b, n=4): return f"a[{b}:{b+n-1}]"

V_LANE = 1
V_XA, V_XB = 2, 3
V_W = 4
V_XR = 5
V_L16 = 9
V_T = 10
WF = 16
ACC = [48, 112]
TB = 176
EP = 188
PK = 220
BIAS = 244
BA = 252

RING = {0: 7, 1: 8, 2: 0, 3: 1, 4: 2, 5: 7, 6: 8, 7: 0, 8: 1, 9: 2, 10: 7, 11: 8, 12: 0, 13: 1}
ISSUE = {0: [2], 1: [3], 2: [4, 5], 3: [6], 4: [7], 5: [8], 6: [9], 7: [10], 8: [11], 9: [12], 10: [13]}

def lane_setup(a):
    a(f"v_and_b32 v{V_LANE}, 63, v0")
    a(f"v_lshrrev_b32 v{V_T}, 6, v0")
    a(f"v_readfirstlane_b32 s{sWAVE}, v{V_T}")
    a(f"v_lshlrev_b32 v{V_L16}, 4, v{V_LANE}")
    a(f"v_cmp_le_u32 s[{sM_UP}:{sM_UP+1}], 32, v{V_LANE}")
    a(f"v_and_b32 v{V_T}, 31, v{V_LANE}")
    a(f"v_cmp_le_u32 s[{sM_J28}:{sM_J28+1}], 28, v{V_T}")
    a(f"s_mov_b32 s{sLOG2E}, 0x3fb8aa3b")
    a(f"s_mov_b32 s{sEPS}, 0x358637bd")

def x_dma(a, j, i):
    a(f"s_add_u32 m0, s{sWX}, {j*16384 + i*1024}")
    a(f"s_add_u32 s{sT0}, s{sROW0}, {j*128 + (i>>1)*16*896}")
    a.vm(f"buffer_load_dwordx4 v{V_XA + (i&1)}, s[{SX}:{SX+3}], s{sT0} offen lds", ("x", j))

def w_dma(a, u, pitch):
    G, ks = u // 4, u % 4
    sec, s = u // 28, u % 28
    a(f"s_add_u32 m0, s{sWL}, {RING[G]*16384 + ks*4096}")
    a(f"s_add_u32 s{sT0}, s{sCOL0 + sec}, {s*16*pitch}")
    a.vm(f"buffer_load_dwordx4 v{V_W}, s[{SW}:{SW+3}], s{sT0} offen lds", ("w", G))

def x_reads(a, j):
    for t in range(4):
        off = j * 16384
        if off >= 65536:
            raise ValueError
        a.lg(f"ds_read_b128 {ar(16*j + 4*t)}, v{V_XR+t} offset:{off}", ("xr", j))

def x_reads_hi(a, j):
    for t in range(4):
        a.lg(f"ds_read_b128 {ar(16*j + 4*t)}, v{V_XR+t} offset:{j*16384 - 65536}", ("xr", j))

def frag_reads(a, u, ntile):
    G, ks = u // 4, u % 4
    base = RING[G] * 16384 + ks * 4096
    z, off = base >> 16, base & 0xffff
    b = u & 1
    for t in range(ntile):
        r = WF + 16 * b + 4 * t
        a.lg(f"ds_read_b64_tr_b16 {vr(r,2)}, v{TB+3*t+z} offset:{off}", ("wf", u, t))
        a.lg(f"ds_read_b64_tr_b16 {vr(r+2,2)}, v{TB+3*t+z} offset:{off+1024}", ("wf", u, t))

def phi_ops(acc, tmp):
    return [f"v_mul_f32 v{tmp}, s{sLOG2E}, v{acc}",
            f"v_exp_f32_e64 v{tmp}, v{tmp} clamp",
            f"v_max_f32 v{acc}, 0, v{acc}",
            f"v_add_f32 v{tmp}, s{sEPS}, v{tmp}",
            f"v_add_f32 v{acc}, v{acc}, v{tmp}"]

def interleave(*lists):
    out = []
    n = max(len(l) for l in lists)
    for i in range(n):
        for l in lists:
            if i < len(l): out.append(l[i])
    return out

def epi_F(sec, t):
    A = ACC[sec] + 16 * t
    P = EP + 8 * (t & 1)
    L = []
    for r in range(0, 16, 2):
        L += [("i", f"v_max_f32 v{A+r}, 0, v{A+r}"), ("i", f"v_max_f32 v{A+r+1}, 0, v{A+r+1}"),
              ("i", f"v_mul_f32 v{A+r}, v{A+r}, v{A+r}"), ("i", f"v_mul_f32 v{A+r+1}, v{A+r+1}, v{A+r+1}"),
              ("i", f"v_cvt_pk_bf16_f32 v{P + r//2}, v{A+r}, v{A+r+1}")]
    off = (8 * sec + 2 * t) * 1024
    L.append(("i", f"s_add_u32 s{sT1}, s{sOUTA}, {off}"))
    L.append(("vm", f"buffer_store_dwordx4 {vr(P)}, v{V_L16}, s[{SWS}:{SWS+3}], s{sT1} offen sc1", ("st", sec, t)))
    L.append(("vm", f"buffer_store_dwordx4 {vr(P+4)}, v{V_L16}, s[{SWS}:{SWS+3}], s{sT1} offen offset:1024 sc1", ("st", sec, t)))
    return L

def epi_phi(A, P, tmp):
    L = []
    for r in range(0, 16, 2):
        L += [("i", x) for x in interleave(phi_ops(A + r, tmp), phi_ops(A + r + 1, tmp + 1))]
        L.append(("i", f"v_cvt_pk_bf16_f32 v{P + r//2}, v{A+r}, v{A+r+1}"))
    return L

def epi_Q(sec, t):
    A = ACC[sec] + 16 * t
    P = EP + 8 * (t & 1)
    L = epi_phi(A, P, EP + 16)
    L.append(("i", f"v_cndmask_b32 v{P+6}, v{P+6}, 0, s[{sM_UP}:{sM_UP+1}]"))
    L.append(("i", f"v_cndmask_b32 v{P+7}, v{P+7}, 0, s[{sM_UP}:{sM_UP+1}]"))
    so = sOUTA + sec
    if t == 2: L.append(("i", f"s_mov_b32 s{sT1}, s{94 + sec}"))
    else: L.append(("i", f"s_add_u32 s{sT1}, s{so}, {t*2048}"))
    L.append(("vm", f"buffer_store_dwordx4 {vr(P)}, v{V_L16}, s[{SWS}:{SWS+3}], s{sT1} offen sc1", ("st", sec, t)))
    L.append(("vm", f"buffer_store_dwordx4 {vr(P+4)}, v{V_L16}, s[{SWS}:{SWS+3}], s{sT1} offen offset:1024 sc1", ("st", sec, t)))
    return L

def epi_Kk(t):
    A = ACC[0] + 16 * t
    P = PK + 8 * t
    L = epi_phi(A, P, EP + 16)
    for r in range(8):
        L.append(("i", f"v_cndmask_b32 v{P+r}, v{P+r}, 0, s[{sM_J28}:{sM_J28+1}]"))
    return L

def emit(a, item):
    if item[0] == "i": a(item[1])
    elif item[0] == "vm": a.vm(item[1], item[2])
    elif item[0] == "lg": a.lg(item[1], item[2])

def group_heads_setup(a, sg):
    a(f"s_lshl_b32 s{sT0}, s{sg}, 2")
    a(f"s_lshr_b32 s{sH0}, 0xDB9630, s{sT0}")
    a(f"s_and_b32 s{sH0}, s{sH0}, 15")
    a(f"s_lshr_b32 s{sNH}, 0x322333, s{sT0}")
    a(f"s_and_b32 s{sNH}, s{sNH}, 15")

def tb_setup(a, offs_sgpr, ntile, dstbase):
    r, c, g, hf, b0, t1 = V_T, V_T + 1, V_T + 2, V_T + 3, V_T + 4, V_T + 5
    a(f"v_bfe_u32 v{r}, v{V_LANE}, 2, 2")
    a(f"v_and_b32 v{c}, 3, v{V_LANE}")
    a(f"v_bfe_u32 v{g}, v{V_LANE}, 4, 1")
    a(f"v_lshrrev_b32 v{hf}, 5, v{V_LANE}")
    a(f"v_lshlrev_b32 v{c}, 3, v{c}")
    a(f"v_lshl_add_u32 v{c}, v{g}, 5, v{c}")
    a(f"v_lshlrev_b32 v{b0}, 8, v{r}")
    a(f"v_lshl_add_u32 v{b0}, v{hf}, 11, v{b0}")
    a(f"v_lshlrev_b32 v{r}, 6, v{r}")
    for t in range(ntile):
        o = offs_sgpr[t]
        if isinstance(o, int): a(f"v_add_u32 v{t1}, {o}, v{c}")
        else: a(f"v_add_u32 v{t1}, {o}, v{c}")
        a(f"v_xor_b32 v{t1}, v{t1}, v{r}")
        a(f"v_add_u32 v{dstbase+3*t}, v{t1}, v{b0}")
        a(f"v_add_u32 v{dstbase+3*t+1}, 0x10000, v{dstbase+3*t}")
        a(f"v_add_u32 v{dstbase+3*t+2}, 0x20000, v{dstbase+3*t}")

def phase1(a, role):
    ntile = {"F": 4, "K": 3, "Q": 3}[role]
    pitch = 3584 if role == "F" else 2688
    srd(a, SX, P_AX, 2048 * 896)
    srd(a, SW, P_W1 if role == "F" else P_WQKV, 448 * pitch)
    srd(a, SWS, P_WS, WS_USED)
    a(f"s_lshl_b32 s{sWL}, s{sWAVE}, 10")
    a(f"s_lshl_b32 s{sWX}, s{sWAVE}, 12")
    a(f"s_lshl_b32 s{sT0}, s{sRB}, 2"); a(f"s_add_u32 s{sT0}, s{sT0}, s{sWAVE}")
    a(f"s_mul_i32 s{sROW0}, s{sT0}, {32*896}")
    if role == "F":
        a(f"s_mul_i32 s{sOUTA}, s{sT0}, {HF_RB}")
        a(f"s_lshl_b32 s{sT1}, s{sROLE}, 14"); a(f"s_add_u32 s{sOUTA}, s{sOUTA}, s{sT1}")
        a(f"s_lshl_b32 s{sCOL0}, s{sROLE}, 9"); a(f"s_add_u32 s{sCOL1}, s{sCOL0}, 256")
        offs = [[0, 64, 128, 192]] * 2
    elif role == "K":
        a(f"s_sub_u32 s{sG}, s{sROLE}, 7")
        group_heads_setup(a, sG)
        a(f"s_lshl_b32 s{sT1}, s{sG}, 7")
        a(f"s_add_u32 s{sCOL0}, s{sT1}, 896"); a(f"s_add_u32 s{sCOL1}, s{sT1}, 1792")
        a(f"s_mul_i32 s{sT2}, s{sH0}, 56"); a(f"s_sub_u32 s{sT2}, s{sT2}, s{sT1}")
        a(f"s_add_u32 s{sT3}, s{sT2}, 56")
        a(f"s_add_u32 s{sOUTB}, s{sT2}, 112"); a(f"s_cmp_eq_u32 s{sNH}, 3"); a(f"s_cselect_b32 s{sOUTB}, s{sOUTB}, s{sT2}")
        offs = [[f"s{sT2}", f"s{sT3}", f"s{sOUTB}"]] * 2
    else:
        a(f"s_sub_u32 s{sG}, s{sROLE}, 13"); a(f"s_lshl_b32 s{sG}, s{sG}, 1")
    l, t0, t1 = V_LANE, V_T, V_T + 1
    a(f"v_lshrrev_b32 v{t0}, 3, v{l}")
    a(f"v_mul_u32_u24 v{t0}, 896, v{t0}")
    a(f"v_and_b32 v{t1}, 7, v{l}")
    a(f"v_lshrrev_b32 v{V_XB}, 4, v{l}")
    a(f"v_xor_b32 v{t1}, v{t1}, v{V_XB}")
    a(f"v_lshl_add_u32 v{V_XA}, v{t1}, 4, v{t0}")
    a(f"v_xor_b32 v{t1}, 4, v{t1}")
    a(f"v_lshl_add_u32 v{V_XB}, v{t1}, 4, v{t0}")
    a(f"v_add_u32 v{V_XB}, {8*896}, v{V_XB}")
    a(f"v_lshrrev_b32 v{t0}, 4, v{l}")
    a(f"v_and_b32 v{t1}, 15, v{l}")
    a(f"v_lshlrev_b32 v{V_W}, 2, v{t0}")
    a(f"v_xor_b32 v{t1}, v{t1}, v{V_W}")
    a(f"s_lshl_b32 s{sT0}, s{sWAVE}, 2")
    a(f"v_add_u32 v{t0}, s{sT0}, v{t0}")
    a(f"v_mul_u32_u24 v{t0}, {pitch}, v{t0}")
    a(f"v_lshl_add_u32 v{V_W}, v{t1}, 4, v{t0}")
    for i in range(4): x_dma(a, 0, i)
    if role == "Q":
        a(f"s_lshl_b32 s{sCOL0}, s{sG}, 7"); a(f"s_add_u32 s{sCOL1}, s{sCOL0}, 128")
    for u in range(0, 4): w_dma(a, u, pitch)
    for i in range(4): x_dma(a, 1, i)
    for u in range(4, 8): w_dma(a, u, pitch)
    for j in range(2, 7):
        for i in range(4): x_dma(a, j, i)
    a(f"v_and_b32 v{t0}, 31, v{l}")
    a(f"v_bfe_u32 v{t1}, v{l}, 1, 3")
    a(f"v_lshrrev_b32 v{V_XR}, 5, v{l}")
    a(f"v_xor_b32 v{t1}, v{t1}, v{V_XR}")
    a(f"v_lshlrev_b32 v{t1}, 4, v{t1}")
    a(f"v_lshl_add_u32 v{t0}, v{t0}, 7, v{t1}")
    a(f"v_add_u32 v{V_XR}, s{sWX}, v{t0}")
    for t in range(1, 4): a(f"v_xor_b32 v{V_XR+t}, {32*t}, v{V_XR}")
    TB1 = None
    if role == "F":
        srd(a, S2, P_B1, 1792 * 2)
        a(f"v_and_b32 v{t0}, 31, v{l}"); a(f"v_lshlrev_b32 v{t0}, 1, v{t0}")
        a(f"s_lshl_b32 s{sT0}, s{sROLE}, 9")
        for t in range(8):
            a.vm(f"buffer_load_ushort v{BIAS+t}, v{t0}, s[{S2}:{S2+3}], s{sT0} offen offset:{64*t}", ("bias",))
        a(f"v_mov_b32 v{BA+1}, 0"); a(f"v_mov_b32 v{BA+2}, 0"); a(f"v_mov_b32 v{BA+3}, 0")
        a(f"v_mov_b32 v{t1}, 0x3f80"); a(f"v_cndmask_b32 v{t1}, v{t1}, 0, s[{sM_UP}:{sM_UP+1}]")
        a(f"v_accvgpr_write_b32 a248, v{t1}")
        for i in range(1, 4): a(f"v_accvgpr_write_b32 a{248+i}, 0")
        tb_setup(a, offs[0], 4, TB)
    elif role == "K":
        tb_setup(a, offs[0], 3, TB)
    else:
        srd(a, S2, P_GW, 896)
        a(f"s_mov_b32 m0, {MISC}")
        a.vm(f"buffer_load_dwordx4 v{V_L16}, s[{S2}:{S2+3}], 0 offen lds", ("gw",))
        q_section_setup(a, 0)
    a.wait_vm(("x", 0))
    x_reads(a, 0)

    filler = []
    def fill(n):
        for _ in range(n):
            if filler: emit(a, filler.pop(0))
    if role == "Q":
        GA = EP + 24
    for u in range(-1, 56):
        nxt = u + 1
        sec, s = (u // 28, u % 28) if u >= 0 else (0, -1)
        if nxt < 56:
            if nxt % 4 == 0:
                G = nxt // 4
                if G == 0:
                    a("s_waitcnt lgkmcnt(0)")
                if role == "Q" and G == 0: a.wait_vm([("w", 0), ("gw",)])
                else: a.wait_vm(("w", G))
                a("s_barrier")
                for g2 in ISSUE.get(G, []):
                    for k in range(4): w_dma(a, 4 * g2 + k, pitch)
            if role == "Q" and nxt == 28:
                q_section_setup(a, 1)
            frag_reads(a, nxt, ntile)
            if role == "Q" and nxt < 28:
                a.lg(f"ds_read_b128 {vr(GA + 4*(nxt&1))}, v{PK} offset:{32*nxt}", ("wf", nxt, 3))
            if nxt % 4 == 1 and nxt < 28 and nxt // 4 + 1 <= 6:
                j = nxt // 4 + 1
                a.wait_vm(("x", j))
                if j == 4:
                    for t in range(4): a(f"v_add_u32 v{V_XR+t}, 0x10000, v{V_XR+t}")
                (x_reads if j < 4 else x_reads_hi)(a, j)
        if u < 0:
            if role == "F": a.wait_vm(("bias",))
            continue
        b = u & 1
        if role == "F" and s == 0:
            for t in range(4):
                a(f"v_mov_b32 v{BA}, v{BIAS + 4*sec + t}")
                a(f"v_mfma_f32_32x32x16_bf16 {vr(ACC[sec]+16*t,16)}, {vr(BA)}, a[248:251], 0")
        for t in range(ntile + (1 if (role == "Q" and sec == 0) else 0)):
            a.wait_lg(("wf", u, t))
            D = vr(ACC[sec] + 16 * t, 16)
            C = D if (s > 0 or role == "F") else "0"
            W = vr(WF + 16 * b + 4 * t) if t < ntile else vr(GA + 4 * b)
            X = ar(4 * s)
            if role == "K": a(f"v_mfma_f32_32x32x16_bf16 {D}, {X}, {W}, {C}")
            else: a(f"v_mfma_f32_32x32x16_bf16 {D}, {W}, {X}, {C}")
            fill(5)
        if u == 27:
            if role == "F":
                for t in range(4): filler += epi_F(0, t)
            elif role == "Q":
                for t in range(3): filler += epi_Q(0, t)
                filler += epi_gate()
            else:
                for t in range(3): filler += epi_Kk(t)
    while filler: emit(a, filler.pop(0))
    if role == "F":
        for t in range(4):
            for it in epi_F(1, t): emit(a, it)
    elif role == "Q":
        for t in range(3):
            for it in epi_Q(1, t): emit(a, it)
    else:
        k_finish(a)

def q_section_setup(a, sec):
    a(f"s_add_u32 s{sT3}, s{sG}, {sec}")
    group_heads_setup(a, sT3)
    a(f"s_lshl_b32 s{sT1}, s{sT3}, 7")
    a(f"s_mul_i32 s92, s{sH0}, 56"); a(f"s_sub_u32 s92, s92, s{sT1}")
    a(f"s_add_u32 s90, s92, 56")
    a(f"s_lshl_b32 s{sT0}, s{sRB}, 2"); a(f"s_add_u32 s{sT0}, s{sT0}, s{sWAVE}")
    a(f"s_lshl_b32 s{sT0}, s{sT0}, 15")
    a(f"s_lshl_b32 s{sT1}, s{sH0}, 11"); a(f"s_add_u32 s{sT0}, s{sT0}, s{sT1}")
    a(f"s_add_u32 s{sOUTA+sec}, s{sT0}, {PQ_OFF}")
    a(f"s_add_u32 s{94+sec}, s{sOUTA+sec}, 4096")
    a(f"s_add_u32 s91, s92, 112")
    a(f"s_cmp_eq_u32 s{sNH}, 3")
    a(f"s_cselect_b32 s91, s91, s92")
    a(f"s_cselect_b32 s{94+sec}, s{94+sec}, {TRASH_OFF}")
    tb_setup(a, ["s92", "s90", "s91"], 3, TB)
    if sec == 0:
        a(f"v_lshrrev_b32 v{PK}, 5, v{V_LANE}"); a(f"v_lshlrev_b32 v{PK}, 4, v{PK}")
        a(f"v_add_u32 v{PK}, {MISC}, v{PK}")
        a(f"s_lshl_b32 s93, s{sRB}, 2"); a(f"s_add_u32 s93, s93, s{sWAVE}"); a(f"s_lshl_b32 s93, s93, 7")
        a(f"s_add_u32 s93, s93, {G_OFF}")
        a(f"s_cmp_eq_u32 s{sG}, 0"); a(f"s_cselect_b32 s93, s93, {TRASH_OFF}")

def epi_gate():
    A = ACC[0] + 48
    T = EP + 18
    L = [("i", f"v_mul_f32 v{T}, s{sLOG2E}, v{A}"),
         ("i", f"v_exp_f32_e64 v{T}, -v{T}"),
         ("i", f"v_and_b32 v{T+1}, 31, v{V_LANE}"),
         ("i", f"v_add_f32 v{T}, 1.0, v{T}"),
         ("i", f"v_rcp_f32 v{T}, v{T}"),
         ("i", f"v_lshlrev_b32 v{T+1}, 2, v{T+1}"),
         ("vm", f"buffer_store_dword v{T}, v{T+1}, s[{SWS}:{SWS+3}], s93 offen sc1", ("st", "g"))]
    return L

def k_finish(a):
    PV = EP
    KVA = ACC[0]
    C1 = EP + 24
    a(f"v_and_b32 v{C1}, 31, v{V_LANE}")
    a(f"v_cmp_eq_u32 vcc, 28, v{C1}")
    a(f"v_mov_b32 v{C1+1}, 0x3f803f80")
    a(f"v_cndmask_b32 v{C1}, 0, v{C1+1}, vcc")
    for t in range(3):
        A = ACC[1] + 16 * t
        P = PV + 8 * t
        for r in range(0, 16, 2):
            a(f"v_cvt_pk_bf16_f32 v{P + r//2}, v{A+r}, v{A+r+1}")
        for r in range(8):
            a(f"v_cndmask_b32 v{P+r}, v{P+r}, v{C1}, s[{sM_J28}:{sM_J28+1}]")
        D = vr(KVA + 16 * t, 16)
        a(f"v_mfma_f32_32x32x16_bf16 {D}, {vr(PK+8*t)}, {vr(P)}, 0")
        a(f"v_mfma_f32_32x32x16_bf16 {D}, {vr(PK+8*t+4)}, {vr(P+4)}, {D}")
    a("s_waitcnt lgkmcnt(0)")
    a("s_barrier")
    AD = V_T
    a(f"s_mul_i32 s{sT0}, s{sWAVE}, 12288")
    a(f"v_add_u32 v{AD}, s{sT0}, v{V_L16}")
    for t in range(3):
        for q in range(4):
            a.lg(f"ds_write_b128 v{AD}, {vr(KVA + 16*t + 4*q)} offset:{(t*4+q)*1024}", ("kvw",))
    a("s_waitcnt lgkmcnt(0)")
    a("s_barrier")
    a(f"s_mul_i32 s{sT0}, s{sWAVE}, {12*256}")
    a(f"v_lshlrev_b32 v{AD+1}, 2, v{V_LANE}")
    a(f"v_add_u32 v{AD}, s{sT0}, v{AD+1}")
    R = ACC[1]
    for i in range(12):
        for src in range(4):
            a.lg(f"ds_read_b32 v{R + 4*i + src}, v{AD} offset:{i*256 + src*12288}", ("kvr", i))
        if i % 3 == 2:
            a("s_waitcnt lgkmcnt(0)")
            for k in range(i - 2, i + 1):
                a(f"v_add_f32 v{R+4*k}, v{R+4*k}, v{R+4*k+1}")
                a(f"v_add_f32 v{R+4*k+2}, v{R+4*k+2}, v{R+4*k+3}")
                a(f"v_add_f32 v{R+4*k}, v{R+4*k}, v{R+4*k+2}")
    a(f"s_lshl_b32 s{sT1}, s{sH0}, 12"); a(f"s_add_u32 s{sT1}, s{sT1}, s{sT0}"); a(f"s_add_u32 s{sT1}, s{sT1}, {KV_OFF}")
    a(f"s_lshl_b32 s{sT2}, s{sNH}, 4")
    a(f"s_mul_i32 s{sT3}, s{sWAVE}, 12")
    for i in range(12):
        a(f"s_add_u32 s90, s{sT3}, {i}")
        a(f"s_cmp_lt_u32 s90, s{sT2}")
        a(f"s_cselect_b32 s91, s{sT1}, {TRASH_OFF}")
        a.vm(f"buffer_atomic_add_f32 v{R+4*i}, v{AD+1}, s[{SWS}:{SWS+3}], s91 offen offset:{i*256}", ("at",))

def decode_role(a):
    a(f"s_and_b32 s{sT0}, s2, 7")
    a(f"s_lshr_b32 s{sT1}, s2, 3")
    a(f"s_lshr_b32 s{sROLE}, s{sT0}, 1"); a(f"s_lshl_b32 s{sROLE}, s{sROLE}, 2")
    a(f"s_and_b32 s{sT2}, s{sT1}, 3"); a(f"s_add_u32 s{sROLE}, s{sROLE}, s{sT2}")
    a(f"s_and_b32 s{sRB}, s{sT0}, 1"); a(f"s_lshl_b32 s{sRB}, s{sRB}, 3")
    a(f"s_lshr_b32 s{sT2}, s{sT1}, 2"); a(f"s_add_u32 s{sRB}, s{sRB}, s{sT2}")

def kernel_phase1():
    a = Asm()
    load_kernargs(a)
    a("s_cmp_ge_u32 s2, 256"); a("s_cbranch_scc1 L1_end")
    decode_role(a)
    lane_setup(a)
    a("s_waitcnt lgkmcnt(0)")
    a(f"s_cmp_lt_u32 s{sROLE}, 7"); a("s_cbranch_scc0 L1_notF")
    phase1(a, "F"); a("s_branch L1_end")
    a("L1_notF:")
    a.vmq = []; a.lgq = []
    a(f"s_cmp_lt_u32 s{sROLE}, 13"); a("s_cbranch_scc0 L1_Q")
    phase1(a, "K"); a("s_branch L1_end")
    a("L1_Q:")
    a.vmq = []; a.lgq = []
    phase1(a, "Q")
    a("L1_end:"); a("s_endpgm")
    return kernel_wrap("p1_kernel", a.finalize(), vgpr=512, sgpr=102, accum=256)

def kernel_zero():
    a = Asm()
    a("s_load_dwordx2 s[4:5], s[0:1], 88")
    a("s_cmp_ge_u32 s2, 16"); a("s_cbranch_scc1 L0_end")
    a("s_waitcnt lgkmcnt(0)")
    srd(a, 8, 4, WS_USED)
    a("s_lshl_b32 s3, s2, 12"); a(f"s_add_u32 s3, s3, {KV_OFF}")
    a("v_lshlrev_b32 v1, 4, v0")
    for i in range(4): a(f"v_mov_b32 v{4+i}, 0")
    a("buffer_store_dwordx4 v[4:7], v1, s[8:11], s3 offen")
    a("L0_end:"); a("s_endpgm")
    return kernel_wrap("p0_kernel", a.finalize(), vgpr=8, sgpr=16, accum=8)

sRB2, sCG, sHB, sW2O, sSTG = 90, 91, 92, 93, 94
SO = 44
P2_ACC = 16
P2_KA = 80
P2_RAW = 112
P2_AO = 128
P2_BR = 192
V2_W = 2
V2_AB = 4
V2_G = 6
V2_G1 = 14
V2_T = 10
V2_O = 8

def acc2(nt, mt): return P2_ACC + 32 * nt + 16 * mt

def p2_setup(a):
    l = V_LANE
    srd(a, S2, P_W2, 1792 * 896)
    srd(a, S3, P_WO, 448 * 896)
    a(f"v_lshrrev_b32 v{V2_T}, 3, v{l}")
    a(f"v_mul_u32_u24 v{V2_T}, 896, v{V2_T}")
    a(f"v_bfe_u32 v{V2_T+1}, v{l}, 4, 1"); a(f"v_lshlrev_b32 v{V2_T+1}, 2, v{V2_T+1}")
    a(f"v_and_b32 v{V2_T+2}, 7, v{l}"); a(f"v_xor_b32 v{V2_T+2}, v{V2_T+2}, v{V2_T+1}")
    a(f"v_lshl_add_u32 v{V2_W}, v{V2_T+2}, 4, v{V2_T}")
    a(f"v_bfe_u32 v{V2_T}, v{l}, 2, 2")
    a(f"v_lshrrev_b32 v{V2_T+1}, 5, v{l}")
    a(f"v_lshl_add_u32 v{V2_T+1}, v{V2_T+1}, 2, v{V2_T}")
    a(f"v_lshlrev_b32 v{V2_T+1}, 7, v{V2_T+1}")
    a(f"v_and_b32 v{V2_T+2}, 3, v{l}"); a(f"v_lshlrev_b32 v{V2_T+2}, 3, v{V2_T+2}")
    a(f"v_bfe_u32 v{V2_T+3}, v{l}, 4, 1"); a(f"v_lshl_add_u32 v{V2_T+2}, v{V2_T+3}, 5, v{V2_T+2}")
    a(f"v_add_u32 v{V2_T+1}, v{V2_T+1}, v{V2_T+2}")
    a(f"v_add_u32 v{V2_T+1}, s{sSTG}, v{V2_T+1}")
    a(f"v_lshrrev_b32 v{V2_T}, 1, v{V2_T}"); a(f"v_lshlrev_b32 v{V2_T}, 6, v{V2_T}")
    a(f"v_add_u32 v{V2_AB}, v{V2_T+1}, v{V2_T}")
    a(f"v_xor_b32 v{V2_T}, 64, v{V2_T}")
    a(f"v_add_u32 v{V2_AB+1}, v{V2_T+1}, v{V2_T}")

def w2_dma(a, i):
    for k in range(4):
        a(f"s_add_u32 m0, s{sSTG}, {(i%4)*4096 + k*1024}")
        a(f"s_add_u32 s{sT0}, s{sW2O}, {(32*i + 8*k)*896}")
        a.vm(f"buffer_load_dwordx4 v{V2_W}, s[{S2}:{S2+3}], s{sT0} offen lds", ("w2", i))

def w2_reads(a, i):
    for kk in range(2):
        ks = 2 * i + kk
        for nt in range(2):
            off = (i % 4) * 4096 + kk * 2048
            r = 8 * ks + 4 * nt
            a.lg(f"ds_read_b64_tr_b16 {ar(r,2)}, v{V2_AB+nt} offset:{off}", ("w2r", i))
            a.lg(f"ds_read_b64_tr_b16 {ar(r+2,2)}, v{V2_AB+nt} offset:{off+1024}", ("w2r", i))

def h_load(a, ks):
    for mt in range(2):
        r = P2_BR + 4 * ((2 * ks + mt) % 16)
        so = sHB + mt
        a(f"s_add_u32 s{sT0}, s{95+mt}, {(ks//4)*4096}")
        a.vm(f"buffer_load_dwordx4 {vr(r)}, v{V_L16}, s[{SWS}:{SWS+3}], s{sT0} offen offset:{(ks%4)*1024} sc1", ("h", ks))

def phase2(a):
    l = V_LANE
    a("; ---- phase 2")
    srd(a, SWS, P_WS, WS_USED)
    srd(a, SO, P_OUT, 2048 * 896)
    a(f"s_lshl_b32 s{sSTG}, s{sWAVE}, 14")
    a(f"s_mul_i32 s{sW2O}, s{sWAVE}, {448*896}"); a(f"s_lshl_b32 s{sT0}, s{sCG}, 7"); a(f"s_add_u32 s{sW2O}, s{sW2O}, s{sT0}")
    a(f"s_lshl_b32 s{sT0}, s{sRB2}, 1"); a(f"s_mul_i32 s95, s{sT0}, {HF_RB}")
    a(f"s_mul_i32 s{sT1}, s{sWAVE}, {28*1024}"); a(f"s_add_u32 s95, s95, s{sT1}"); a(f"s_add_u32 s96, s95, {HF_RB}")
    p2_setup(a)
    for i in range(4): w2_dma(a, i)
    for ks in range(8): h_load(a, ks)
    a(f"v_and_b32 v{V2_T}, 31, v{l}"); a(f"v_lshlrev_b32 v{V2_T+1}, 2, v{V2_T}"); a(f"v_lshlrev_b32 v{V2_T}, 1, v{V2_T}")
    a(f"s_lshl_b32 s{sT0}, s{sRB2}, 8"); a(f"s_add_u32 s{sT0}, s{sT0}, {G_OFF}")
    a.vm(f"buffer_load_dword v{V2_G}, v{V2_T+1}, s[{SWS}:{SWS+3}], s{sT0} offen sc1", ("g",))
    a.vm(f"buffer_load_dword v{V2_G+1}, v{V2_T+1}, s[{SWS}:{SWS+3}], s{sT0} offen offset:128 sc1", ("g",))
    srd(a, SX + 4 * 0 + 0 if False else 4, P_B2, 896)
    a(f"s_lshl_b32 s{sT0}, s{sCG}, 7")
    a.vm(f"buffer_load_ushort v3, v{V2_T}, s[4:7], s{sT0} offen", ("b2",))
    a.vm(f"buffer_load_ushort v8, v{V2_T}, s[4:7], s{sT0} offen offset:64", ("b2",))
    a(f"v_mov_b32 v{V2_T}, 0x3f80"); a(f"v_cndmask_b32 v{V2_T}, v{V2_T}, 0, s[{sM_UP}:{sM_UP+1}]")
    a(f"v_accvgpr_write_b32 a248, v{V2_T}")
    for i in range(1, 4): a(f"v_accvgpr_write_b32 a{248+i}, 0")
    BT = P2_RAW
    for i in range(1, 4): a(f"v_mov_b32 v{BT+i}, 0")
    a.wait_vm(("b2",))
    a(f"s_cmp_eq_u32 s{sWAVE}, 0"); a(f"s_cselect_b32 s{sT0}, 0xffff, 0")
    for nt in range(2):
        a(f"v_and_b32 v{BT}, s{sT0}, v{[3,8][nt]}")
        for mt in range(2):
            a(f"v_mfma_f32_32x32x16_bf16 {vr(acc2(nt,mt),16)}, {vr(BT)}, a[248:251], 0")
    for mt in range(2): a(f"v_sub_f32 v{V2_G1+mt}, 1.0, v{V2_G+mt}")
    for i in range(14):
        a.wait_vm(("w2", i))
        w2_reads(a, i)
        a.wait_lg(("w2r", i))
        if i + 4 < 14: w2_dma(a, i + 4)
        elif i == 10:
            pass
        for kk in range(2):
            ks = 2 * i + kk
            a.wait_vm(("h", ks))
            for nt in range(2):
                for mt in range(2):
                    D = vr(acc2(nt, mt), 16)
                    a(f"v_mfma_f32_32x32x16_bf16 {D}, {ar(8*ks+4*nt)}, {vr(P2_BR + 4*((2*ks+mt)%16))}, {D}")
            if ks + 8 < 28: h_load(a, ks + 8)
    a(f"s_mul_i32 s{sW2O}, s{sWAVE}, {112*896}"); a(f"s_lshl_b32 s{sT0}, s{sCG}, 7"); a(f"s_add_u32 s{sW2O}, s{sW2O}, s{sT0}")
    for k in range(15):
        a(f"s_add_u32 m0, s{sSTG}, {k*1024}")
        a(f"s_add_u32 s{sT0}, s{sW2O}, {8*k*896}")
        a.vm(f"buffer_load_dwordx4 v{V2_W}, s[{S3}:{S3+3}], s{sT0} offen lds", ("wo",))
    a(f"s_lshl_b32 s{sT0}, s{sRB2}, 16"); a(f"s_lshl_b32 s{sT1}, s{sWAVE}, 13"); a(f"s_add_u32 s95, s{sT0}, s{sT1}")
    a(f"s_add_u32 s95, s95, {PQ_OFF}"); a(f"s_add_u32 s96, s95, {PQ_RB}")
    for hh in range(4):
        for mt in range(2):
            a(f"s_add_u32 s{sT0}, s{95+mt}, {hh*2048}")
            for k in range(2):
                a.vm(f"buffer_load_dwordx4 {vr(P2_BR + 16*hh + 8*mt + 4*k)}, v{V_L16}, s[{SWS}:{SWS+3}], s{sT0} offen offset:{k*1024} sc1", ("pq", hh))
    for nt in range(2):
        for mt in range(2):
            for r in range(16): a(f"v_mul_f32 v{acc2(nt,mt)+r}, v{acc2(nt,mt)+r}, v{V2_G1+mt}")
    a(f"s_lshl_b32 s97, s{sWAVE}, 14"); a(f"s_add_u32 s97, s97, {KV_OFF}")
    for hh in range(4):
        a(f"s_add_u32 s{sT0}, s97, {hh*4096}")
        for q in range(4):
            a.vm(f"buffer_load_dwordx4 {vr(P2_RAW+4*q)}, v{V_L16}, s[{SWS}:{SWS+3}], s{sT0} offen offset:{q*1024} sc1", ("kv", hh))
        a.wait_vm(("kv", hh))
        for r in range(8): a(f"v_cvt_pk_bf16_f32 v{P2_KA+8*hh+r}, v{P2_RAW+2*r}, v{P2_RAW+2*r+1}")
    for hh in range(4):
        for ks in range(2):
            for nt in range(2):
                off = (28 * hh + 16 * ks) * 128
                r = P2_AO + 16 * hh + 8 * ks + 4 * nt
                a.lg(f"ds_read_b64_tr_b16 {vr(r,2)}, v{V2_AB+nt} offset:{off}", ("wor", hh))
                a.lg(f"ds_read_b64_tr_b16 {vr(r+2,2)}, v{V2_AB+nt} offset:{off+1024}", ("wor", hh))
        a("s_waitcnt lgkmcnt(0)")
    N = P2_RAW; O = V2_O
    for hh in range(4):
        for mt in range(2):
            pq = P2_BR + 16 * hh + 8 * mt
            a(f"v_mfma_f32_32x32x16_bf16 {vr(N,16)}, {vr(P2_KA+8*hh)}, {vr(pq)}, 0")
            a(f"v_mfma_f32_32x32x16_bf16 {vr(N,16)}, {vr(P2_KA+8*hh+4)}, {vr(pq+4)}, {vr(N,16)}")
            X, Y = 2, 3
            a(f"v_mov_b32 v{X}, v{N+12}"); a(f"v_mov_b32 v{Y}, v{N+12}")
            a(f"v_permlane32_swap_b32 v{X}, v{Y}")
            a(f"v_add_f32 v{Y}, s{sEPS}, v{Y}")
            a(f"v_rcp_f32 v{Y}, v{Y}")
            a(f"v_mul_f32 v{Y}, v{Y}, v{V2_G+mt}")
            for r in range(0, 16, 2):
                a(f"v_mul_f32 v{N+r}, v{N+r}, v{Y}"); a(f"v_mul_f32 v{N+r+1}, v{N+r+1}, v{Y}")
                a(f"v_cvt_pk_bf16_f32 v{O + r//2}, v{N+r}, v{N+r+1}")
            a(f"v_cndmask_b32 v{O+6}, v{O+6}, 0, s[{sM_UP}:{sM_UP+1}]")
            a(f"v_cndmask_b32 v{O+7}, v{O+7}, 0, s[{sM_UP}:{sM_UP+1}]")
            for ks in range(2):
                for nt in range(2):
                    D = vr(acc2(nt, mt), 16)
                    a(f"v_mfma_f32_32x32x16_bf16 {D}, {vr(P2_AO+16*hh+8*ks+4*nt)}, {vr(O+4*ks)}, {D}")
    a("s_waitcnt lgkmcnt(0)")
    a("s_barrier")
    W = 80
    a(f"v_and_b32 v{W}, 31, v{l}")
    a(f"v_and_b32 v{W+1}, 7, v{l}"); a(f"v_lshrrev_b32 v{W+2}, 5, v{l}"); a(f"v_xor_b32 v{W+1}, v{W+1}, v{W+2}")
    a(f"v_lshlrev_b32 v{W+1}, 4, v{W+1}")
    a(f"v_lshl_add_u32 v{W}, v{W}, 8, v{W+1}")
    a(f"v_add_u32 v{W}, s{sSTG}, v{W}")
    for q in range(1, 4): a(f"v_xor_b32 v{W+q}, {32*q}, v{W}")
    for nt in range(2):
        for mt in range(2):
            for q in range(4):
                a.lg(f"ds_write_b128 v{W+q}, {vr(acc2(nt,mt)+4*q)} offset:{nt*128 + mt*8192}", ("fw",))
    a("s_waitcnt lgkmcnt(0)")
    a("s_barrier")
    a(f"v_lshrrev_b32 v{W}, 3, v0")
    a(f"v_and_b32 v{W+1}, 7, v0")
    a(f"v_lshlrev_b32 v{W+2}, 1, v{W+1}"); a(f"v_and_b32 v{W+3}, 7, v{W}"); a(f"v_xor_b32 v{W+2}, v{W+2}, v{W+3}")
    a(f"v_lshlrev_b32 v{W+2}, 4, v{W+2}"); a(f"v_lshl_add_u32 v{W+2}, v{W}, 8, v{W+2}")
    a(f"v_xor_b32 v{W+3}, 16, v{W+2}")
    a(f"v_mul_u32_u24 v{W+4}, 896, v{W}"); a(f"v_lshl_add_u32 v{W+4}, v{W+1}, 4, v{W+4}")
    a(f"s_mul_i32 s{sT0}, s{sRB2}, {64*896}"); a(f"s_lshl_b32 s{sT1}, s{sCG}, 7"); a(f"s_add_u32 s{sT0}, s{sT0}, s{sT1}")
    a(f"s_add_u32 s{sT1}, s{sT0}, {32*896}")
    R = 96
    for i in range(2):
        for src in range(4):
            for c in range(2):
                a.lg(f"ds_read_b128 {vr(R + 32*i + 8*src + 4*c)}, v{W+2+c} offset:{src*16384 + i*8192}", ("fr", i))
        if i == 0: pass
    for i in range(2):
        a("s_waitcnt lgkmcnt(8)" if i == 0 else "s_waitcnt lgkmcnt(0)")
        B = R + 32 * i
        for e in range(8):
            a(f"v_add_f32 v{B+e}, v{B+e}, v{B+8+e}"); a(f"v_add_f32 v{B+16+e}, v{B+16+e}, v{B+24+e}")
        for e in range(8): a(f"v_add_f32 v{B+e}, v{B+e}, v{B+16+e}")
        for e in range(4): a(f"v_cvt_pk_bf16_f32 v{B+8+e}, v{B+2*e}, v{B+2*e+1}")
        a.vm(f"buffer_store_dwordx4 {vr(B+8)}, v{W+4}, s[{SO}:{SO+3}], s{sT0+i} offen", ("out",))

def kernel_phase2():
    a = Asm()
    load_kernargs(a)
    a("s_cmp_ge_u32 s2, 256"); a("s_cbranch_scc1 L2_end")
    a(f"s_and_b32 s{sT0}, s2, 7"); a(f"s_lshr_b32 s{sT1}, s2, 3")
    a(f"s_cmp_ge_u32 s{sT1}, 28"); a("s_cbranch_scc1 L2_end")
    a(f"s_mul_i32 s{sT2}, s{sT1}, 37"); a(f"s_lshr_b32 s{sT2}, s{sT2}, 8")
    a(f"s_mul_i32 s{sT3}, s{sT2}, 7"); a(f"s_sub_u32 s{sCG}, s{sT1}, s{sT3}")
    a(f"s_lshl_b32 s{sRB2}, s{sT0}, 2"); a(f"s_add_u32 s{sRB2}, s{sRB2}, s{sT2}")
    lane_setup(a)
    a("s_waitcnt lgkmcnt(0)")
    phase2(a)
    a("L2_end:"); a("s_endpgm")
    return kernel_wrap("p2_kernel", a.finalize(), vgpr=512, sgpr=102, accum=256)

def build_m1():
    ks = [kernel_zero(), kernel_phase1(), kernel_phase2()]
    return file_wrap(["; @launch kernel=p0_kernel grid=(16,1,1) block=(256,1,1) lds=0",
                      "; @launch kernel=p1_kernel grid=(256,1,1) block=(256,1,1) lds=163840",
                      "; @launch kernel=p2_kernel grid=(256,1,1) block=(256,1,1) lds=65536"], ks)

if __name__ == "__main__":
    out = sys.argv[1] if len(sys.argv) > 1 else "m1.s"
    open(out, "w").write(build_m1())
```
